```python
import torch

def _softmax(x, axis=-1):
    return torch.softmax(x, dim=axis)
def _gelu(x):
    return torch.nn.functional.gelu(x, approximate="tanh")
def _silu(x):
    return torch.nn.functional.silu(x)
def _sigmoid(x):
    return torch.sigmoid(x)
def _layernorm(x, axis=-1, eps=1e-5):
    m = x.mean(dim=axis, keepdim=True)
    v = x.var(dim=axis, keepdim=True, unbiased=False)
    return (x - m) / torch.sqrt(v + eps)
def _scatter_add(tgt, idx, src, axis=0):
    return tgt.clone().index_add_(axis, idx, src)
def _segment_sum(src, seg, n):
    out = torch.zeros((n,) + src.shape[1:], dtype=src.dtype)
    return out.index_add_(0, seg, src)
def _pad(x, pw):
    flat = tuple(v for pair in reversed(pw) for v in pair)
    return torch.nn.functional.pad(x, flat)

kernel_name = 'interleave_layers__grouped_kv_mqa__dense_activation_silu__prompt'

def setup_inputs():

    _w = (lambda a: (lambda t: t.to(torch.bfloat16) if t.is_floating_point() else t)(torch.as_tensor(a)))
    def _A_setup():
        B, S, D, H = 1, 2048, 1024, 32
        Dh = D // H
        return {
            "x": _w((lambda *s: torch.randn(*s, dtype=torch.bfloat16) * 0.05)(B, S, D)),
            "wq": _w((lambda *s: torch.randn(*s, dtype=torch.bfloat16) * 0.05)(D, H * Dh)),
            "wk": _w((lambda *s: torch.randn(*s, dtype=torch.bfloat16) * 0.05)(D, Dh)),
            "wv": _w((lambda *s: torch.randn(*s, dtype=torch.bfloat16) * 0.05)(D, Dh)),
            "wo": _w((lambda *s: torch.randn(*s, dtype=torch.bfloat16) * 0.05)(H * Dh, D)),
        }
    _A_in = _A_setup()

    def _B_setup():
        B, S, D, F = 1, 2048, 1024, 3584
        return {
            "x": _w((lambda *s: torch.randn(*s, dtype=torch.bfloat16) * 0.05)(B, S, D)),
            "w1": _w((lambda *s: torch.randn(*s, dtype=torch.bfloat16) * 1.6)(D, F) * (D ** -0.5)),
            "w2": _w((lambda *s: torch.randn(*s, dtype=torch.bfloat16) * 1.6)(F, D) * (F ** -0.5)),
        }
    _B_in = _B_setup()

    return {
        "A_x": _A_in["x"],
        "A_wq": _A_in["wq"],
        "A_wk": _A_in["wk"],
        "A_wv": _A_in["wv"],
        "A_wo": _A_in["wo"],
        "B_x": _B_in["x"],
        "B_w1": _B_in["w1"],
        "B_w2": _B_in["w2"],
    }

def reference(A_x, A_wq, A_wk, A_wv, A_wo, B_x, B_w1, B_w2):
    def _A_ref(x, wq, wk, wv, wo):
        B, S, D = x.shape
        H = 32
        Dh = D // H
        q = (lambda x, *d: x.permute(*d))((x @ wq).reshape(B, S, H, Dh), 0, 2, 1, 3)
        k = x @ wk
        v = x @ wv
        scores = torch.einsum("bhqd,bkd->bhqk", q, k) * (Dh ** -0.5)
        p = _softmax(scores, axis=-1)
        o = torch.einsum("bhqk,bkd->bhqd", p, v)
        return (lambda x, *d: x.permute(*d))(o, 0, 2, 1, 3).reshape(B, S, H * Dh) @ wo

    def _B_ref(x, w1, w2):
        h = torch.einsum("bsd,df->bsf", x, w1)
        h = _silu(h)
        out = torch.einsum("bsf,fd->bsd", h, w2)
        return out

    x = A_x
    x = x + _A_ref(_layernorm(x, axis=-1), A_wq, A_wk, A_wv, A_wo)
    x = x + _B_ref(_layernorm(x, axis=-1), B_w1, B_w2)
    x = x + _A_ref(_layernorm(x, axis=-1), A_wq, A_wk, A_wv, A_wo)
    x = x + _B_ref(_layernorm(x, axis=-1), B_w1, B_w2)
    return x
```

```python
from bh import *
import json, sys
def vr(b,n): return f"v[{b}:{b+n-1}]"
def mfma16(d, ra, rb): return f"v_mfma_f32_16x16x32_bf16 {vr(d,4)}, {vr(ra,4)}, {vr(rb,4)}, {vr(d,4)}"
def mfma4(d, ra, rb): return f"v_mfma_f32_4x4x4_16b_bf16 {vr(d,4)}, {vr(ra,2)}, {vr(rb,2)}, {vr(d,4)}"
def mfma32(d, ra, rb, c=None):
    return f"v_mfma_f32_32x32x16_bf16 {vr(d,16)}, {vr(ra,4)}, {vr(rb,4)}, {vr(d if c is None else c,16)}"
sel=16; Q=[[20,24],[28,32]]; NM=[36,52]; O=[68,84]; L=[100,104]; Sx=[108,124]; Pp=[140,148]; KF=[156,160]; VF=[164,168]; vrd=8
def block(un, rd, SEQ):
    s,p=Sx[un],Pp[un]; on=un^1
    e=lambda i:f"v_exp_f32 v{s+i}, v{s+i}"
    c=lambda i:f"v_cvt_pk_bf16_f32 v{p+i}, v{s+2*i}, v{s+2*i+1}"
    M={1:mfma32(O[on],VF[1],Pp[on]+4),2:mfma32(Sx[on],KF[0],Q[on][0],NM[on]),3:mfma16(L[on],sel,Pp[on]+4),4:mfma32(Sx[on],KF[1],Q[on][1]),5:mfma32(O[un],VF[0],p),6:mfma16(L[un],sel,p),
       31:mfma4(L[on],sel,Pp[on]+4),32:mfma4(L[on],sel,Pp[on]+6),61:mfma4(L[un],sel,p),62:mfma4(L[un],sel,p+2),63:mfma4(L[un],sel,p+4)}
    out=[]
    for x in eval(SEQ):
        if isinstance(x,tuple):
            out+=rd.get(("pre",x[1]),[]); out.append(M[x[1]]); out+=rd.get(x[1],[])
        else: out.append(x)
    return out
def loop(SEQ, bar=False, opt=""):
    o=[]
    for T in range(4):
        cur=T*4096; nxt=((T+1)%4)*4096
        ev={1:[f"ds_read_b128 {vr(VF[1],4)}, v{vrd} offset:{cur+3072}"],("pre",5):["s_waitcnt lgkmcnt(3)"],2:[f"ds_read_b128 {vr(KF[0],4)}, v{vrd} offset:{nxt}"],4:[f"ds_read_b128 {vr(KF[1],4)}, v{vrd} offset:{nxt+1024}"]}
        od={("pre",1):["s_waitcnt lgkmcnt(0)"],5:[f"ds_read_b128 {vr(VF[0],4)}, v{vrd} offset:{nxt+2048}"]}
        if "B" in opt:
            od[("pre",2)]=["s_cmp_lg_u32 s30, 0"]; od[2]=[f"s_cbranch_scc1 L_x{T}", f"L_x{T}:"]
        if "T" in opt:
            ev[("pre",3)]=["s_mov_b32 m0, s31","s_cmp_eq_u32 s30, 0"]; ev[3]=[f"s_cbranch_scc1 L_y{T}", f"buffer_load_dwordx4 v{vrd}, s[8:11], s30 offen offset:{T*1024} lds", f"L_y{T}:"]
        if "D" in opt:
            ev[("pre",3)]=["s_mov_b32 m0, s31","s_cmp_lg_u32 s30, 0"]; ev[3]=[f"s_cbranch_scc1 L_y{T}", f"buffer_load_dwordx4 v{vrd}, s[8:11], s30 offen offset:{T*1024} lds", f"L_y{T}:"]
        if "E" in opt:
            ev[("pre",3)]=["s_mov_b32 m0, s31"]; ev[3]=[f"buffer_load_dwordx4 v{vrd}, s[8:11], s30 offen offset:{T*1024} lds"]
        if bar and T==3:
            if "S" in opt:
                ev[("pre",1)]=["s_add_u32 s32, s32, 1"]*11+["s_cmp_lg_u32 s30, 0"]; ev[1]=ev[1]+["v_add_u32 v9, s30, v9","s_cbranch_scc1 L_z","L_z:","s_waitcnt vmcnt(4)"]
            ev[1]=ev[1]+["s_barrier","s_setprio 3"]
        b0,b1=block(0,ev,SEQ),block(1,od,SEQ)
        if bar:
            if T==1: b1=["s_setprio 2"]+b1
            if T==2: b0=["s_setprio 1"]+b0; b1=["s_setprio 0"]+b1
        o+=b0+b1
    return o
def body(mix, iters):
    b=["s_load_dwordx2 s[4:5], s[0:1], 0","s_waitcnt lgkmcnt(0)","s_mov_b32 s8, s4\ns_mov_b32 s9, s5\ns_mov_b32 s10, 0x100000\ns_mov_b32 s11, 0x20000"]
    for i in range(9,176): b.append(f"v_mov_b32 v{i}, 0")
    b.append("s_mov_b32 s30, 0\ns_mov_b32 s31, 16384\ns_mov_b32 s32, 0")
    b.append("v_and_b32 v8, 63, v0\nv_lshlrev_b32 v8, 4, v8")
    for i in range(16): b.append(f"ds_write_b128 v8, v[12:15] offset:{i*1024}")
    b+=["s_waitcnt lgkmcnt(0)","s_barrier","s_memtime s[12:13]","s_waitcnt lgkmcnt(0)",f"s_mov_b32 s16, {iters}",".p2align 6","L_loop:"]
    b+=mix
    b+=["s_sub_u32 s16, s16, 1","s_cmp_lg_u32 s16, 0","s_cbranch_scc1 L_loop","s_waitcnt lgkmcnt(0)","s_memtime s[14:15]","s_waitcnt lgkmcnt(0)","s_sub_u32 s14, s14, s12","v_mov_b32 v1, s14",
        "v_lshrrev_b32 v2, 6, v0","s_lshl_b32 s3, s2, 4","v_add_u32 v2, s3, v2","v_lshlrev_b32 v2, 2, v2","buffer_store_dword v1, v2, s[8:11], 0 offen","s_waitcnt vmcnt(0)"]
    return "\n".join(b)
M=lambda k:f'("M",{k})'
def S(txt):
    out=[]
    for t in txt.split():
        if t[0]=='M': out.append(f'("M",{t[1:]})')
        else: out.append(f"{t[0]}({t[1:]})")
    return "["+",".join(out)+"]"
seqs={
 "cur": "e0 e1 M1 e2 e3 e4 M2 c0 e5 c1 e6 M3 e7 c2 e8 M4 c3 e9 e10 e11 M5 c4 e12 e13 c5 M6 e14 e15 c6 c7",
 "v2":  "e0 e1 M2 e2 e3 e4 M1 c0 e5 c1 e6 M4 e7 c2 e8 c3 M3 e9 e10 M5 e11 c4 e12 e13 M6 c5 e14 e15 c6 c7",
 "v3":  "M2 e0 e1 e2 M1 e3 e4 e5 c0 M4 e6 e7 c1 c2 M3 e8 c3 e9 M5 e10 e11 e12 c4 M6 e13 e14 c5 e15 c6 c7",
 "v4":  "M2 e0 e1 e2 e3 M4 c0 c1 e4 e5 M1 e6 e7 c2 e8 M3 c3 e9 e10 M5 e11 c4 e12 e13 M6 c5 e14 e15 c6 c7",
 "m4a": "e0 e1 M31 M1 e2 e3 e4 c0 M32 M2 e5 c1 e6 e7 c2 M61 M4 e8 c3 e9 e10 M62 M5 e11 c4 e12 e13 c5 e14 e15 c6 c7",
 "m4b": "e0 M61x",
}
del seqs["m4b"]
seqs={
 "cur": "e0 e1 M1 e2 e3 e4 M2 c0 e5 c1 e6 M3 e7 c2 e8 M4 c3 e9 e10 e11 M5 c4 e12 e13 c5 M6 e14 e15 c6 c7",
 "m4a": "e0 e1 M31 M1 e2 e3 e4 c0 M32 M2 e5 c1 e6 e7 c2 M61 M4 e8 c3 e9 e10 M62 M5 e11 c4 e12 e13 c5 e14 e15 c6 c7",
 "m4b": "e0 M31 e1 M1 e2 e3 e4 M32 c0 M2 e5 c1 e6 c2x M61 e7 M4 e8 c2 c3 e9 M62x e10 M5 e11 c4 e12 e13 M62 c5 e14 e15 c6 c7",
 "m4c": "e0 e1 M1 e2 e3 e4 M31 c0 M2 e5 c1 e6 e7 M32 c2 M4 e8 c3 e9 e10 M61 e11 M5 c4 e12 e13 c5 M62 e14 e15 c6 c7",
 "m4d": "e0 e1 M1 e2 e3 e4 M2 c0 e5 c1 e6 M31 e7 M32 c2 e8 M4 c3 e9 e10 e11 M5 c4 e12 e13 c5 M61 e14 M62 e15 c6 c7",
 "m4e": "e0 e1 M1 e2 e3 e4 M32 e5 M2 c0 c1 e6 e7 M61 e8 M4 c2 c3 e9 e10 M62 e11 M5 c4 e12 c5 e13 e14 M63 e15 c6 c7",
 "m4f": "e0 e1 M1 e2 e3 e4 c0 M32 e5 M2 c1 e6 e7 c2 M61 e8 M4 c3 e9 e10 c4x e11 M62 c4 M5 e12 c5 e13 e14 M63 e15 c6 c7",
}
names=[]
for k,sq in seqs.items():
    sq=" ".join(t for t in sq.split() if not t.endswith("x"))
    n=k
    t=kernel_text("k_kernel", body(loop(S(sq),True,""),250), vgpr=176, accum=176, block=(512,1,1), lds=20480)
    build(t,"k_kernel",11,f"iss_{n}_a_.co"); names.append(n+"_a_")
json.dump(names,open("iss_names.json","w"))
```

```python
from bh import *
import json, sys
def vr(b,n): return f"v[{b}:{b+n-1}]"
def mfma16(d, ra, rb): return f"v_mfma_f32_16x16x32_bf16 {vr(d,4)}, {vr(ra,4)}, {vr(rb,4)}, {vr(d,4)}"
def mfma4(d, ra, rb): return f"v_mfma_f32_4x4x4_16b_bf16 {vr(d,4)}, {vr(ra,2)}, {vr(rb,2)}, {vr(d,4)}"
def mfma32(d, ra, rb, c=None):
    return f"v_mfma_f32_32x32x16_bf16 {vr(d,16)}, {vr(ra,4)}, {vr(rb,4)}, {vr(d if c is None else c,16)}"
sel=16; Q=[[20,24],[28,32]]; NM=[36,52]; O=[68,84]; L=[100,104]; Sx=[108,124]; Pp=[140,148]; KF=[156,160]; VF=[164,168]; vrd=8
def block(n, rd, SEQ):
    b=n&1; s,p=Sx[b],Pp[b]; ob=b^1
    e=lambda i:f"v_exp_f32 v{s+i}, v{s+i}"
    c=lambda i:f"v_cvt_pk_bf16_f32 v{p+i}, v{s+2*i}, v{s+2*i+1}"
    M={1:mfma32(O[0],VF[1],Pp[ob]+4),2:mfma32(Sx[ob],KF[0],Q[0][0],NM[0]),3:mfma16(L[0],sel,Pp[ob]+4),4:mfma32(Sx[ob],KF[1],Q[0][1]),5:mfma32(O[0],VF[0],p),6:mfma16(L[0],sel,p)}
    out=[]
    for x in eval(SEQ):
        if isinstance(x,tuple):
            out+=rd.get(("pre",x[1]),[]); out.append(M[x[1]]); out+=rd.get(x[1],[])
        else: out.append(x)
    return out
def loop(SEQ, bar=False, opt=""):
    o=[]
    for n in range(8):
        t=lambda k:((n+k)%4)*4096
        w=["s_waitcnt lgkmcnt(3)"]
        ev={1:[f"ds_read_b128 {vr(VF[1],4)}, v{vrd} offset:{t(0)+3072}"],2:[f"ds_read_b128 {vr(KF[0],4)}, v{vrd} offset:{t(2)}"],4:[f"ds_read_b128 {vr(KF[1],4)}, v{vrd} offset:{t(2)+1024}"],5:[f"ds_read_b128 {vr(VF[0],4)}, v{vrd} offset:{t(1)+2048}"]}
        if "W" in opt:
            ev[("pre",1)]=["s_waitcnt lgkmcnt(2)"]; ev[("pre",4)]=["s_waitcnt lgkmcnt(2)"]
        else:
            for k in (1,2,4,5): ev[("pre",k)]=w
        if "E" in opt and n%2==0:
            ev[("pre",3)]=["s_mov_b32 m0, s31"]; ev[3]=[f"buffer_load_dwordx4 v{vrd}, s[8:11], s30 offen offset:{(n//2)*1024} lds"]
        if bar and n==6: ev[1]=ev[1]+["s_barrier","s_setprio 3"]
        b0=block(n,ev,SEQ)
        if bar and n in (3,4,5): b0=[f"s_setprio {5-n}"]+b0
        o+=b0
    return o
def body(mix, iters):
    b=["s_load_dwordx2 s[4:5], s[0:1], 0","s_waitcnt lgkmcnt(0)","s_mov_b32 s8, s4\ns_mov_b32 s9, s5\ns_mov_b32 s10, 0x100000\ns_mov_b32 s11, 0x20000"]
    for i in range(9,176): b.append(f"v_mov_b32 v{i}, 0")
    b.append("s_mov_b32 s30, 0\ns_mov_b32 s31, 16384\ns_mov_b32 s32, 0")
    b.append("v_and_b32 v8, 63, v0\nv_lshlrev_b32 v8, 4, v8")
    for i in range(16): b.append(f"ds_write_b128 v8, v[12:15] offset:{i*1024}")
    b+=["s_waitcnt lgkmcnt(0)","s_barrier","s_memtime s[12:13]","s_waitcnt lgkmcnt(0)",f"s_mov_b32 s16, {iters}",".p2align 6","L_loop:"]
    b+=mix
    b+=["s_sub_u32 s16, s16, 1","s_cmp_lg_u32 s16, 0","s_cbranch_scc1 L_loop","s_waitcnt lgkmcnt(0)","s_memtime s[14:15]","s_waitcnt lgkmcnt(0)","s_sub_u32 s14, s14, s12","v_mov_b32 v1, s14",
        "v_lshrrev_b32 v2, 6, v0","s_lshl_b32 s3, s2, 4","v_add_u32 v2, s3, v2","v_lshlrev_b32 v2, 2, v2","buffer_store_dword v1, v2, s[8:11], 0 offen","s_waitcnt vmcnt(0)"]
    return "\n".join(b)
M=lambda k:f'("M",{k})'
def S(txt):
    out=[]
    for t in txt.split():
        if t[0]=='M': out.append(f'("M",{t[1:]})')
        else: out.append(f"{t[0]}({t[1:]})")
    return "["+",".join(out)+"]"
seqs={
 "cur": "e0 e1 M1 e2 e3 e4 M2 c0 e5 c1 e6 M3 e7 c2 e8 M4 c3 e9 e10 e11 M5 c4 e12 e13 c5 M6 e14 e15 c6 c7",
 "v2":  "e0 e1 M2 e2 e3 e4 M1 c0 e5 c1 e6 M4 e7 c2 e8 c3 M3 e9 e10 M5 e11 c4 e12 e13 M6 c5 e14 e15 c6 c7",
 "v3":  "M2 e0 e1 e2 M1 e3 e4 e5 c0 M4 e6 e7 c1 c2 M3 e8 c3 e9 M5 e10 e11 e12 c4 M6 e13 e14 c5 e15 c6 c7",
 "v4":  "M2 e0 e1 e2 e3 M4 c0 c1 e4 e5 M1 e6 e7 c2 e8 M3 c3 e9 e10 M5 e11 c4 e12 e13 M6 c5 e14 e15 c6 c7",
 "m4a": "e0 e1 M31 M1 e2 e3 e4 c0 M32 M2 e5 c1 e6 e7 c2 M61 M4 e8 c3 e9 e10 M62 M5 e11 c4 e12 e13 c5 e14 e15 c6 c7",
 "m4b": "e0 M61x",
}
del seqs["m4b"]
names=[]
for bar in (True,False):
  for opt in ("","W","EW"):
    n="one_"+opt+("_bar" if bar else "")
    t=kernel_text("k_kernel", body(loop(S(seqs["cur"]),bar,opt),250), vgpr=176, accum=176, block=(512,1,1), lds=20480)
    build(t,"k_kernel",11,f"iss_{n}_a_.co"); names.append(n+"_a_")
json.dump(names,open("iss_names.json","w"))
```

```python
from bh import *
import json, sys
def vr(b,n): return f"v[{b}:{b+n-1}]"
def mfma16(d, ra, rb): return f"v_mfma_f32_16x16x32_bf16 {vr(d,4)}, {vr(ra,4)}, {vr(rb,4)}, {vr(d,4)}"
def mfma4(d, ra, rb): return f"v_mfma_f32_4x4x4_16b_bf16 {vr(d,4)}, {vr(ra,2)}, {vr(rb,2)}, {vr(d,4)}"
def mfma32(d, ra, rb, c=None):
    return f"v_mfma_f32_32x32x16_bf16 {vr(d,16)}, {vr(ra,4)}, {vr(rb,4)}, {vr(d if c is None else c,16)}"
sel=16; Q=[[20,24],[28,32]]; NM=[36,52]; O=[68,84]; L=[100,104]; Sx=[108,124]; Pp=[140,148]; KF=[156,160]; VF=[164,168]; vrd=8
S3=[108,124,140,176]
def block(n, rd, SEQ, NB):
    s=S3[n%NB]; sp=S3[(n-1)%NB]; sn=S3[(n+1)%NB]
    e=lambda i:f"v_exp_f32 v{s+i}, v{s+i}"
    sm32=lambda a_,b_: f"v_smfmac_f32_32x32x32_bf16 {vr(O[0],16)}, {vr(a_,4)}, {vr(b_,8)}, v10"
    sm16=lambda b_: f"v_smfmac_f32_16x16x64_bf16 {vr(L[0],4)}, {vr(sel,4)}, {vr(b_,8)}, v10"
    M={1:sm32(VF[1],sp+8),2:mfma32(sn,KF[0],Q[0][0],NM[0]),3:sm16(sp+8),4:mfma32(sn,KF[1],Q[0][1]),5:sm32(VF[0],s),6:sm16(s)}
    out=[]
    for x in eval(SEQ):
        if isinstance(x,tuple):
            out+=rd.get(("pre",x[1]),[]); out.append(M[x[1]]); out+=rd.get(x[1],[])
        else: out.append(x)
    return out
def loop(SEQ, bar, NB, dma):
    o=[]
    for n in range(8):
        t=lambda k:((n+k)%4)*4096
        ev={1:[f"ds_read_b128 {vr(VF[1],4)}, v{vrd} offset:{t(0)+3072}"],2:[f"ds_read_b128 {vr(KF[0],4)}, v{vrd} offset:{t(2)}"],4:[f"ds_read_b128 {vr(KF[1],4)}, v{vrd} offset:{t(2)+1024}"],5:[f"ds_read_b128 {vr(VF[0],4)}, v{vrd} offset:{t(1)+2048}"]}
        ev[6]=["s_waitcnt lgkmcnt(2)"]; ev[3]=["s_waitcnt lgkmcnt(2)"]
        if dma and n%2==0: ev[3]=ev[3]+[f"buffer_load_dwordx4 v{vrd}, s[8:11], s30 offen offset:{(n//2)*1024} lds"]
        if bar and n==6: ev[1]=ev[1]+["s_barrier","s_setprio 3"]
        b0=block(n,ev,SEQ,NB)
        if bar and n in (3,4,5): b0=[f"s_setprio {5-n}"]+b0
        o+=b0
    return o
def body(mix, iters):
    b=["s_load_dwordx2 s[4:5], s[0:1], 0","s_waitcnt lgkmcnt(0)","s_mov_b32 s8, s4\ns_mov_b32 s9, s5\ns_mov_b32 s10, 0x100000\ns_mov_b32 s11, 0x20000"]
    for i in range(9,192): b.append(f"v_mov_b32 v{i}, 0")
    b.append("s_mov_b32 m0, 16384\ns_mov_b32 s30, 0\ns_mov_b32 s31, 16384\ns_mov_b32 s32, 0")
    b.append("v_and_b32 v8, 63, v0\nv_lshlrev_b32 v8, 4, v8")
    for i in range(16): b.append(f"ds_write_b128 v8, v[12:15] offset:{i*1024}")
    b+=["s_waitcnt lgkmcnt(0)","s_barrier","s_memtime s[12:13]","s_waitcnt lgkmcnt(0)",f"s_mov_b32 s16, {iters}",".p2align 6","L_loop:"]
    b+=mix
    b+=["s_sub_u32 s16, s16, 1","s_cmp_lg_u32 s16, 0","s_cbranch_scc1 L_loop","s_waitcnt lgkmcnt(0)","s_memtime s[14:15]","s_waitcnt lgkmcnt(0)","s_sub_u32 s14, s14, s12","v_mov_b32 v1, s14",
        "v_lshrrev_b32 v2, 6, v0","s_lshl_b32 s3, s2, 4","v_add_u32 v2, s3, v2","v_lshlrev_b32 v2, 2, v2","buffer_store_dword v1, v2, s[8:11], 0 offen","s_waitcnt vmcnt(0)"]
    return "\n".join(b)
M=lambda k:f'("M",{k})'
def S(txt):
    out=[]
    for t in txt.split():
        if t[0]=='M': out.append(f'("M",{t[1:]})')
        else: out.append(f"{t[0]}({t[1:]})")
    return "["+",".join(out)+"]"
seqs={
 "cur": "e0 e1 M1 e2 e3 e4 M2 c0 e5 c1 e6 M3 e7 c2 e8 M4 c3 e9 e10 e11 M5 c4 e12 e13 c5 M6 e14 e15 c6 c7",
 "v2":  "e0 e1 M2 e2 e3 e4 M1 c0 e5 c1 e6 M4 e7 c2 e8 c3 M3 e9 e10 M5 e11 c4 e12 e13 M6 c5 e14 e15 c6 c7",
 "v3":  "M2 e0 e1 e2 M1 e3 e4 e5 c0 M4 e6 e7 c1 c2 M3 e8 c3 e9 M5 e10 e11 e12 c4 M6 e13 e14 c5 e15 c6 c7",
 "v4":  "M2 e0 e1 e2 e3 M4 c0 c1 e4 e5 M1 e6 e7 c2 e8 M3 c3 e9 e10 M5 e11 c4 e12 e13 M6 c5 e14 e15 c6 c7",
 "m4a": "e0 e1 M31 M1 e2 e3 e4 c0 M32 M2 e5 c1 e6 e7 c2 M61 M4 e8 c3 e9 e10 M62 M5 e11 c4 e12 e13 c5 e14 e15 c6 c7",
 "m4b": "e0 M61x",
}
del seqs["m4b"]
sq={
 "a":("e0 e1 M1 e2 e3 e4 M2 e5 e6 e7 M3 e8 M4 e9 e10 e11 M5 e12 e13 e14 M6 e15",4),
 "b":("e0 e1 e2 M1 e3 e4 e5 M2 e6 e7 e8 M3 e9 M4 e10 e11 e12 M5 e13 e14 e15 M6",4),
 "c":("M2 e0 e1 e2 M1 e3 e4 e5 M4 e6 e7 e8 M3 e9 e10 M5 e11 e12 e13 M6 e14 e15",4),
 "d":("e0 M2 e1 e2 e3 M1 e4 e5 e6 M3 e7 M4 e8 e9 e10 M5 e11 e12 e13 M6 e14 e15",4),
}
names=[]
for k,(q,nb) in sq.items():
  for bar in (True,False):
    n="nc"+k+("_bar" if bar else "")
    t=kernel_text("k_kernel", body(loop(S(q),bar,nb,bar),250), vgpr=192, accum=192, block=(512,1,1), lds=20480)
    build(t,"k_kernel",11,f"iss_{n}_a_.co"); names.append(n+"_a_")
json.dump(names,open("iss_names.json","w"))
```
